```python
import torch

def _softmax(x, axis=-1):
    return torch.softmax(x, dim=axis)
def _gelu(x):
    return torch.nn.functional.gelu(x, approximate="tanh")
def _silu(x):
    return torch.nn.functional.silu(x)
def _sigmoid(x):
    return torch.sigmoid(x)
def _layernorm(x, axis=-1, eps=1e-5):
    m = x.mean(dim=axis, keepdim=True)
    v = x.var(dim=axis, keepdim=True, unbiased=False)
    return (x - m) / torch.sqrt(v + eps)
def _scatter_add(tgt, idx, src, axis=0):
    return tgt.clone().index_add_(axis, idx, src)
def _segment_sum(src, seg, n):
    out = torch.zeros((n,) + src.shape[1:], dtype=src.dtype)
    return out.index_add_(0, seg, src)
def _pad(x, pw):
    flat = tuple(v for pair in reversed(pw) for v in pair)
    return torch.nn.functional.pad(x, flat)

kernel_name = 'gated_mix__softmax_full_mha__ssm_conv_h3__prompt'

def setup_inputs():

    _w = (lambda a: (lambda t: t.to(torch.bfloat16) if t.is_floating_point() else t)(torch.as_tensor(a)))
    def _A_setup():
        B, S, D = 1, 2048, 448
        return {
            "x": _w((lambda *s: torch.randn(*s, dtype=torch.bfloat16) * 0.05)(B, S, D)),
            "wqkv": _w((lambda *s: torch.randn(*s, dtype=torch.bfloat16) * 0.8)(D, 3 * D)),
            "wo": _w((lambda *s: torch.randn(*s, dtype=torch.bfloat16) * 0.05)(D, D)),
        }
    _A_in = _A_setup()

    def _B_setup():
        B, S, D = 1, 2048, 448
        ks = 4
        return {
            "q": _w((lambda *s: torch.randn(*s, dtype=torch.bfloat16) * 0.05)(B, S, D)),
            "k": _w((lambda *s: torch.randn(*s, dtype=torch.bfloat16) * 0.4)(B, S, D)),
            "v": _w((lambda *s: torch.randn(*s, dtype=torch.bfloat16) * 0.4)(B, S, D)),
            "shift_k": _w((lambda *s: torch.randn(*s, dtype=torch.bfloat16) * 0.4)(D, ks) * 0.5),
            "ssm_k": _w((lambda *s: torch.randn(*s, dtype=torch.bfloat16) * 0.8)(D, S) * (1.0 / S ** 0.5)),
            "ssm_D": _w((lambda *s: torch.randn(*s, dtype=torch.bfloat16) * 0.4)(D)),
        }
    _B_in = _B_setup()

    return {
        "A_x": _A_in["x"],
        "A_wqkv": _A_in["wqkv"],
        "A_wo": _A_in["wo"],
        "B_q": _B_in["q"],
        "B_k": _B_in["k"],
        "B_v": _B_in["v"],
        "B_shift_k": _B_in["shift_k"],
        "B_ssm_k": _B_in["ssm_k"],
        "B_ssm_D": _B_in["ssm_D"],
        "gate_w": _w((lambda *s: torch.randn(*s, dtype=torch.bfloat16) * 0.05)(448) * 16.0),
    }

def reference(A_x, A_wqkv, A_wo, B_q, B_k, B_v, B_shift_k, B_ssm_k, B_ssm_D, gate_w):
    def _A_ref(x, wqkv, wo):
        B, S, D = x.shape
        H = 16; Dh = D // H
        qkv = (lambda x, *d: x.permute(*d))((x @ wqkv).reshape(B, S, 3, H, Dh), 2, 0, 3, 1, 4)
        q, k, v = qkv[0], qkv[1], qkv[2]
        scale = Dh ** -0.5
        scores = torch.einsum("bhqd,bhkd->bhqk", q, k) * scale
        p = _softmax(scores, axis=-1)
        o = torch.einsum("bhqk,bhkd->bhqd", p, v)
        return (lambda x, *d: x.permute(*d))(o, 0, 2, 1, 3).reshape(B, S, D) @ wo

    def _B_ref(q, k, v, shift_k, ssm_k, ssm_D):
        B, S, D = q.shape
        ks = shift_k.shape[-1]
        k_pad = _pad(k, ((0, 0), (ks - 1, 0), (0, 0)))
        k_shift = torch.zeros_like(k)
        for t in range(ks):
            k_shift = k_shift + k_pad[:, t:t + S, :] * shift_k[:, ks - 1 - t][None, None, :]
        kv = k_shift * v
        L = 2 * S
        kv_pad = _pad(kv, ((0, 0), (0, S), (0, 0)))
        kf_pad = _pad(ssm_k, ((0, 0), (0, S)))
        kv_f = (lambda x, axes=(-2,-1): torch.fft.rfft2(x.float(), dim=axes))(kv_pad[:, None, :, :], axes=(1, 2))
        kf_f = (lambda x, axes=(-2,-1): torch.fft.rfft2(x.float(), dim=axes))(kf_pad[:, None, :], axes=(1, 2))
        kf_f = (lambda x, *d: x.permute(*d))(kf_f, 1, 2, 0)
        y_f = kv_f * kf_f[None, :, :, :]
        y = (lambda x, s, axes=(-2,-1): torch.fft.irfft2(x, s=s, dim=axes).to(torch.bfloat16))(y_f, (1, L), axes=(1, 2))[:, 0, :S, :]
        y = y + kv * ssm_D[None, None, :]
        return q * y

    x = A_x
    g = _sigmoid((x * gate_w).sum(-1, keepdims=True))
    a = _A_ref(x, A_wqkv, A_wo)
    b = _B_ref(x, B_k, B_v, B_shift_k, B_ssm_k, B_ssm_D)
    return g * a + (1 - g) * b
```

```python
import re

class Ins:
    __slots__ = ("text", "mn", "ops", "mods", "kind", "vdef", "vuse", "sdef", "suse", "label", "target",
                 "mfma", "srcA", "srcB", "srcC", "trans", "nop", "comment", "wide_store", "lds_dma", "sdwa")
    def __repr__(self):
        return self.text

TRANS = re.compile(r"^v_(exp|log|rcp|rsq|sqrt|sin|cos)_(f32|f16|legacy_f32)|^v_rcp_iflag")
_reg = re.compile(r"^(-|\|)?(abs\()?([vas])(\[(\d+):(\d+)\]|(\d+))\)?\|?$")

def parse_reg(tok):
    t = tok.strip()
    if t.startswith("neg(") or t.startswith("abs("):
        t = t[4:-1]
    if t.startswith("-"):
        t = t[1:]
    if t.startswith("|") and t.endswith("|"):
        t = t[1:-1]
    if t in ("vcc", "vcc_lo", "vcc_hi"):
        return {("s", "vcc")}
    if t in ("exec", "exec_lo", "exec_hi"):
        return {("s", "exec")}
    if t == "m0":
        return {("s", "m0")}
    if t == "scc":
        return set()
    m = re.match(r"^([vas])\[(\d+):(\d+)\]$", t)
    if m:
        return {(m.group(1), i) for i in range(int(m.group(2)), int(m.group(3)) + 1)}
    m = re.match(r"^([vas])(\d+)$", t)
    if m:
        return {(m.group(1), int(m.group(2)))}
    return set()

def split_ops(s):
    out, depth, cur = [], 0, ""
    for ch in s:
        if ch in "[(":
            depth += 1
        if ch in "])":
            depth -= 1
        if ch == "," and depth == 0:
            out.append(cur.strip()); cur = ""
        else:
            cur += ch
    if cur.strip():
        out.append(cur.strip())
    return out

def mfma_passes(mn):
    if "32x32x16" in mn or "32x32x8" in mn: return 8
    if "16x16x32" in mn or "16x16x16" in mn: return 4
    if "32x32x2_f32" in mn: return 16
    if "16x16x4_f32" in mn: return 8
    raise ValueError("unknown mfma " + mn)

def parse(text):
    ins = Ins()
    ins.text = text
    ins.label = None; ins.target = None; ins.mfma = 0; ins.trans = False; ins.nop = 0
    ins.vdef = set(); ins.vuse = set(); ins.sdef = set(); ins.suse = set()
    ins.srcA = set(); ins.srcB = set(); ins.srcC = set()
    ins.wide_store = False; ins.lds_dma = False; ins.sdwa = False
    t = text.split(";")[0].split("//")[0].strip()
    if not t:
        ins.kind = "none"; ins.mn = ""; ins.ops = []; return ins
    if t.endswith(":"):
        ins.kind = "label"; ins.label = t[:-1]; ins.mn = ""; ins.ops = []; return ins
    if t.startswith("."):
        ins.kind = "directive"; ins.mn = t.split()[0]; ins.ops = []; return ins
    parts = t.split(None, 1)
    mn = parts[0]; ins.mn = mn
    rest = parts[1] if len(parts) > 1 else ""
    ops = split_ops(rest)
    mods = []
    if ops:
        last = ops[-1]
        toks = last.split()
        ops[-1] = toks[0]
        mods = toks[1:]
    ins.ops = ops; ins.mods = mods
    def V(x): return {r for r in x if r[0] in "va"}
    def S(x): return {r for r in x if r[0] == "s"}
    R = [parse_reg(o) for o in ops]
    allmods = " ".join(mods)
    if mn.startswith("v_mfma"):
        ins.kind = "mfma"; ins.mfma = mfma_passes(mn)
        ins.vdef = V(R[0]); ins.srcA = V(R[1]); ins.srcB = V(R[2]); ins.srcC = V(R[3])
        ins.vuse = ins.srcA | ins.srcB | ins.srcC
        ins.suse = {("s", "exec")}
    elif mn.startswith("v_"):
        ins.kind = "valu"
        ins.trans = bool(TRANS.match(mn))
        ins.sdwa = "sdwa" in mn or "op_sel" in allmods
        base = re.sub(r"_(e32|e64|sdwa|dpp)$", "", mn)
        if base.startswith("v_cmp"):
            ins.sdef = S(R[0])
            if base.startswith("v_cmpx"): ins.sdef |= {("s", "exec")}
            for r in R[1:]:
                ins.vuse |= V(r); ins.suse |= S(r)
        elif base in ("v_readfirstlane_b32", "v_readlane_b32"):
            ins.sdef = S(R[0])
            for r in R[1:]:
                ins.vuse |= V(r); ins.suse |= S(r)
        elif base.startswith("v_permlane") and "swap" in base:
            ins.vdef = V(R[0]) | V(R[1]); ins.vuse = V(R[0]) | V(R[1])
        elif base in ("v_add_co_u32", "v_sub_co_u32", "v_subrev_co_u32"):
            ins.vdef = V(R[0]); ins.sdef = S(R[1])
            for r in R[2:]:
                ins.vuse |= V(r); ins.suse |= S(r)
        elif base in ("v_addc_co_u32", "v_subb_co_u32"):
            ins.vdef = V(R[0]); ins.sdef = S(R[1])
            for r in R[2:]:
                ins.vuse |= V(r); ins.suse |= S(r)
        else:
            ins.vdef = V(R[0])
            for r in R[1:]:
                ins.vuse |= V(r); ins.suse |= S(r)
            if base.startswith("v_fmac") or base.startswith("v_pk_fmac") or base.startswith("v_mac") or base == "v_writelane_b32" or base.startswith("v_dot2c") or "UNUSED_PRESERVE" in allmods or mn.endswith("_dpp"):
                ins.vuse |= ins.vdef
            if base.startswith("v_cndmask") and len(ops) == 3:
                ins.suse |= {("s", "vcc")}
        ins.suse |= {("s", "exec")}
    elif mn.startswith("ds_"):
        ins.kind = "ds"
        if mn.startswith("ds_read") or mn.startswith("ds_bpermute") or mn.startswith("ds_permute") or mn.startswith("ds_swizzle"):
            ins.vdef = V(R[0])
            for r in R[1:]: ins.vuse |= V(r)
        elif "_rtn" in mn:
            ins.vdef = V(R[0])
            for r in R[1:]: ins.vuse |= V(r)
        else:
            for r in R: ins.vuse |= V(r)
    elif mn.startswith("buffer_") or mn.startswith("global_"):
        ins.kind = "vmem"
        isbuf = mn.startswith("buffer_")
        if mn in ("buffer_wbl2", "buffer_inv"):
            pass
        elif "load" in mn:
            ldsflag = ("lds" in mods) or ("_lds_" in mn)
            ins.lds_dma = ldsflag
            if ldsflag:
                for r in R:
                    ins.vuse |= V(r); ins.suse |= S(r)
                ins.suse |= {("s", "m0")}
            else:
                ins.vdef = V(R[0])
                for r in R[1:]:
                    ins.vuse |= V(r); ins.suse |= S(r)
        elif "store" in mn:
            for r in R:
                ins.vuse |= V(r); ins.suse |= S(r)
            if "x3" in mn or "x4" in mn:
                ins.wide_store = True
                data = R[0] if isbuf else R[1]
                ins.srcA = V(data)
        elif "atomic" in mn:
            for r in R:
                ins.vuse |= V(r); ins.suse |= S(r)
            if "sc0" in mods:
                ins.vdef = V(R[0])
        else:
            raise ValueError("unparsed vmem " + text)
    elif mn.startswith("s_"):
        ins.kind = "salu"
        if mn == "s_nop":
            ins.nop = int(ops[0], 0) + 1
        elif mn in ("s_branch",) or mn.startswith("s_cbranch"):
            ins.kind = "branch"; ins.target = ops[0]
            if "vcc" in mn: ins.suse = {("s", "vcc")}
            if "exec" in mn: ins.suse = {("s", "exec")}
        elif mn in ("s_waitcnt", "s_barrier", "s_endpgm", "s_setprio", "s_sleep", "s_sethalt"):
            pass
        elif mn.startswith("s_cmp") or mn.startswith("s_bitcmp"):
            for r in R: ins.suse |= S(r)
        elif mn.startswith("s_load") or mn.startswith("s_buffer_load"):
            ins.kind = "smem"
            ins.sdef = S(R[0])
            for r in R[1:]: ins.suse |= S(r)
        elif mn in ("s_memtime", "s_memrealtime"):
            ins.kind = "smem"; ins.sdef = S(R[0])
        elif mn == "s_getreg_b32":
            ins.sdef = S(R[0])
        elif "saveexec" in mn:
            ins.sdef = S(R[0]) | {("s", "exec")}
            for r in R[1:]: ins.suse |= S(r)
            ins.suse |= {("s", "exec")}
        else:
            ins.sdef = S(R[0])
            for r in R[1:]: ins.suse |= S(r)
            if mn.startswith("s_cmov") or mn.startswith("s_addk") or mn.startswith("s_mulk"):
                ins.suse |= S(R[0])
    else:
        raise ValueError("unknown instruction " + text)
    return ins

def required_wait(prod, cons):
    need = 0
    pk, ck = prod.kind, cons.kind
    if pk == "valu":
        if ck == "mfma" and prod.vdef & cons.vuse:
            need = max(need, 2)
        if ck == "mfma" and ("s", "exec") in prod.sdef:
            need = max(need, 4)
        if ck == "valu":
            base = cons.mn
            if prod.trans and not cons.trans and prod.vdef & cons.vuse:
                need = max(need, 1)
            if prod.trans and cons.trans and prod.vdef & cons.vuse:
                need = max(need, 1)
            if prod.sdwa and (prod.vdef & (cons.vuse | cons.vdef)):
                need = max(need, 1)
            if base.startswith("v_readfirstlane") or base.startswith("v_readlane"):
                if prod.vdef & cons.vuse: need = max(need, 1)
                if base.startswith("v_readlane") and (prod.sdef & cons.suse - {("s", "exec")}): need = max(need, 4)
                if ("s", "exec") in prod.sdef: need = max(need, 4)
            if base.startswith("v_writelane"):
                if prod.sdef & (cons.suse - {("s", "exec")}): need = max(need, 4)
                if ("s", "exec") in prod.sdef: need = max(need, 4)
            if base.startswith("v_permlane"):
                if prod.vdef & cons.vuse: need = max(need, 2)
                if ("s", "exec") in prod.sdef: need = max(need, 4)
            if base.endswith("_dpp") or "row_" in " ".join(cons.mods) or "quad_perm" in " ".join(cons.mods) or "wave_" in " ".join(cons.mods):
                if prod.vdef & cons.vuse: need = max(need, 2)
                if ("s", "exec") in prod.sdef: need = max(need, 5)
            sd = prod.sdef - {("s", "exec")}
            if sd & cons.suse:
                need = max(need, 2)
            if ("s", "exec") in prod.sdef and any(o.startswith("exec") for o in cons.ops):
                need = max(need, 2)
            if base.startswith("v_div_fmas") and ("s", "vcc") in prod.sdef: need = max(need, 4)
        if ck == "vmem" and (prod.sdef & cons.suse):
            need = max(need, 5)
        if ck in ("salu", "smem", "branch"):
            sd = prod.sdef
            if sd & cons.suse:
                if ck == "branch" and (("s", "vcc") in sd or ("s", "exec") in sd): need = max(need, 5)
                else: need = max(need, 4)
    if pk == "mfma":
        p = prod.mfma
        D = prod.vdef
        if ck == "mfma":
            if D & cons.srcC:
                if D == cons.srcC and cons.mfma == p and p > 2:
                    pass
                else:
                    need = max(need, {2: 4, 4: 6, 8: 10, 16: 18}[p])
            if D & (cons.srcA | cons.srcB):
                need = max(need, {2: 5, 4: 8, 8: 12, 16: 20}[p])
            if (D & cons.vdef) and not (D == cons.vdef and D == cons.srcC):
                if not (D == cons.srcC):
                    need = max(need, {2: 5, 4: 8, 8: 12, 16: 20}[p])
        elif ck in ("valu", "vmem", "ds"):
            if D & (cons.vuse | cons.vdef):
                need = max(need, {2: 5, 4: 8, 8: 12, 16: 20}[p])
            if ck == "valu" and (prod.srcC & cons.vdef):
                need = max(need, {2: 1, 4: 3, 8: 7, 16: 15}[p])
            if ck in ("ds", "vmem") and (prod.srcC & cons.vdef):
                need = max(need, {2: 1, 4: 3, 8: 7, 16: 15}[p])
    if pk == "vmem" and prod.wide_store:
        if ck in ("valu", "mfma") and (prod.srcA & cons.vdef):
            need = max(need, 2)
        elif ck in ("ds", "vmem") and (prod.srcA & cons.vdef):
            need = max(need, 1)
    if pk == "ds" and prod.mn.startswith("ds_write") and ("b128" in prod.mn or "b96" in prod.mn):
        pass
    if pk == "salu":
        if ("s", "m0") in prod.sdef and (cons.lds_dma or cons.mn.startswith("s_sendmsg") or "addtid" in cons.mn):
            need = max(need, 1)
    return need

MAXW = 21

def hazard_pass(lines, verbose=False):
    ins = [parse(l) for l in lines]
    total = 0
    def index():
        labels = {x.label: i for i, x in enumerate(ins) if x.kind == "label"}
        pb = {}
        for i, x in enumerate(ins):
            if x.kind == "branch" and x.target in labels:
                pb.setdefault(labels[x.target], []).append(i)
        return pb
    preds_branch = index()
    def fallthrough_ok(x):
        return not (x.mn == "s_branch" or x.mn == "s_endpgm")
    i = 0
    while i < len(ins):
        c = ins[i]
        if c.kind in ("none", "label", "directive") or c.mn == "s_nop":
            i += 1; continue
        deficit = 0; why = None
        stack = [(i - 1, 0)]
        seen = {}
        while stack:
            j, w = stack.pop()
            first = True
            while j >= 0 and w < MAXW:
                if seen.get(j, 99) <= w:
                    break
                seen[j] = w
                p = ins[j]
                if p.kind == "label":
                    for b in preds_branch.get(j, []):
                        stack.append((b, w))
                    j -= 1
                    k = j
                    while k >= 0 and ins[k].kind in ("none", "directive"):
                        k -= 1
                    if k >= 0 and ins[k].kind != "label" and not fallthrough_ok(ins[k]):
                        break
                    continue
                if p.kind in ("none", "directive"):
                    j -= 1; continue
                need = required_wait(p, c)
                if need > w and need - w > deficit:
                    deficit = need - w; why = p
                w += p.nop if p.nop else 1
                j -= 1
        if deficit > 0:
            n = deficit
            new = []
            while n > 0:
                k = min(n, 16)
                new.append(parse(f"    s_nop {k-1}"))
                n -= k
            ins[i:i] = new
            total += deficit
            if verbose:
                print(f"; hazard: +{deficit} before [{c.text.strip()}] after [{why.text.strip()}]")
            preds_branch = index()
            i += len(new)
        i += 1
    return [x.text for x in ins], total

class VM:
    def __init__(self, a):
        self.a = a; self.q = []
    def issue(self, tag):
        self.q.append(tag)
    def wait(self, *tags, extra=""):
        last = -1
        for i, t in enumerate(self.q):
            if t in tags: last = i
        if last < 0:
            return
        n = len(self.q) - 1 - last
        n = min(n, 63)
        self.a(f"s_waitcnt vmcnt({n}){extra}")
        self.q = self.q[len(self.q) - n:] if n else []
    def drain(self):
        self.a("s_waitcnt vmcnt(0)"); self.q = []

class Asm:
    def __init__(self):
        self.lines = []
        self.uid = 0
    def __call__(self, s):
        for l in s.split("\n"):
            l = l.strip()
            if not l: continue
            if l.endswith(":") or l.startswith("."):
                self.lines.append(l)
            else:
                self.lines.append("    " + l)
    def c(self, s):
        self.lines.append("    ; " + s)
    def label(self, base):
        self.uid += 1
        return f"L_{base}_{self.uid}"
```

```python
from asmkit import *
NAME = "gated_mix__softmax_full_mha__ssm_conv_h3__prompt"
S, D, H, DH = 2048, 448, 16, 28
KA_X, KA_WQKV, KA_WO, KA_BQ, KA_K, KA_V, KA_SHK, KA_SSMK, KA_SSMD, KA_GATE, KA_OUT, KA_DBG, KA_WS = [8*i for i in range(13)]
MB = 1 << 20
KV_OFF = 0
QF_OFF = 4*MB
KN_OFF = 6*MB
G_OFF  = 6*MB + 65536
UT_OFF = 7*MB
ZT_OFF = 9*MB
OF_OFF = 11*MB
WS_SIZE = 16*MB
QSCALE = (28 ** -0.5) * 1.4426950408889634

import struct
def f32hex(x):
    return "0x%08x" % struct.unpack("<I", struct.pack("<f", x))[0]

def srd(a, s, karg_off, size):
    a(f"s_load_dwordx2 s[{s}:{s+1}], s[0:1], {karg_off}")
    a(f"s_mov_b32 s{s+2}, {size}")
    a(f"s_mov_b32 s{s+3}, 0x20000")

def kernel_header(a, name):
    a(f".globl {name}")
    a(".p2align 8")
    a(f".type {name},@function")
    a(f"{name}:")

def kernel_desc(name, vgpr, agpr=0, sgpr=96):
    acc = (vgpr + 3) // 4 * 4
    return f""".p2align 6
.amdhsa_kernel {name}
  .amdhsa_next_free_vgpr {acc + agpr}
  .amdhsa_next_free_sgpr {sgpr}
  .amdhsa_accum_offset {acc}
  .amdhsa_group_segment_fixed_size 0
  .amdhsa_kernarg_size 104
  .amdhsa_user_sgpr_count 2
  .amdhsa_user_sgpr_kernarg_segment_ptr 1
  .amdhsa_system_sgpr_workgroup_id_x 1
.end_amdhsa_kernel
"""

def wave_sum_dpp(a, v, op="add"):
    o = f"v_{op}_f32_dpp"
    for sh in (1, 2, 4, 8):
        a(f"{o} v{v}, v{v}, v{v} row_shr:{sh} row_mask:0xf bank_mask:0xf bound_ctrl:1")
    a(f"{o} v{v}, v{v}, v{v} row_bcast:15 row_mask:0xa bank_mask:0xf")
    a(f"{o} v{v}, v{v}, v{v} row_bcast:31 row_mask:0xc bank_mask:0xf")
```

```python
from common import *

K1_SLOT = 28672
K1_LDS = 5 * K1_SLOT

def gen_k1(a, name):
    vm = VM(a)
    kernel_header(a, name)
    Lend = a.label("k1_end")
    a("s_cmp_ge_u32 s2, 256")
    a(f"s_cbranch_scc1 {Lend}")
    SX, SW, SK, SV, SSH, SG, SWS = 4, 8, 12, 16, 20, 24, 28
    srd(a, SX, KA_X, S*D*2); srd(a, SW, KA_WQKV, D*3*D*2); srd(a, SK, KA_K, S*D*2); srd(a, SV, KA_V, S*D*2)
    srd(a, SSH, KA_SHK, D*4*2); srd(a, SG, KA_GATE, D*2); srd(a, SWS, KA_WS, WS_SIZE)
    a("v_and_b32 v1, 63, v0")
    a("v_lshrrev_b32 v12, 6, v0")
    a("v_readfirstlane_b32 s33, v12")
    a("s_lshr_b32 s34, s2, 1"); a("s_and_b32 s34, s34, 3")
    a("s_and_b32 s35, s2, 1")
    a("s_lshr_b32 s36, s2, 3")
    a("s_and_b32 s37, s36, 3"); a("s_lshl_b32 s34, s34, 2"); a("s_add_u32 s34, s34, s37")
    a("s_lshr_b32 s36, s36, 2"); a("s_lshl_b32 s35, s35, 3"); a("s_add_u32 s35, s35, s36")
    a("s_lshl_b32 s36, s2, 2"); a("s_add_u32 s36, s36, s33")
    a("s_mul_hi_u32 s37, s36, 0x12492493")
    a("s_mul_i32 s38, s37, 14"); a("s_sub_u32 s38, s36, s38")
    a("s_mul_i32 s39, s37, 28672"); a("s_lshl_b32 s40, s38, 6"); a("s_add_u32 s39, s39, s40"); a("s_sub_u32 s39, s39, 2688")
    a("s_lshl_b32 s40, s38, 8")
    a("s_lshl_b32 s41, s38, 17"); a("s_lshl_b32 s42, s37, 6"); a("s_sub_u32 s41, s41, s42"); a(f"s_add_u32 s41, s41, {UT_OFF + 4080}")
    a("s_cmp_lt_u32 s36, 896")
    a("s_cselect_b32 s39, s39, 0x80000000"); a("s_cselect_b32 s40, s40, 0x80000000"); a("s_cselect_b32 s41, s41, 0x80000000")
    a("v_and_b32 v12, 15, v1")
    a("v_lshrrev_b32 v13, 4, v1")
    a("v_mul_u32_u24 v14, 7168, v13")
    a("v_lshl_add_u32 v14, v12, 2, v14")
    a("v_add_u32 v96, s39, v14")
    a("v_lshl_add_u32 v97, v12, 4, s40")
    a("v_lshlrev_b32 v14, 13, v12")
    a("v_lshlrev_b32 v15, 4, v13")
    a("v_sub_u32 v14, v14, v15")
    a("v_add_u32 v98, s41, v14")
    a("s_mul_i32 s42, s36, 1792")
    a("v_lshlrev_b32 v99, 4, v1")
    a("v_add_u32 v100, s42, v99")
    a("v_cmp_gt_u32 vcc, 56, v1")
    a("v_mov_b32 v14, 0x80000000")
    a("v_cndmask_b32 v100, v14, v100, vcc")
    a("s_waitcnt lgkmcnt(0)")
    KR, VR, WR, GX, GW = 104, 116, 124, 128, 136
    a(f"buffer_load_dwordx4 v[{WR}:{WR+3}], v97, s[{SSH}:{SSH+3}], 0 offen"); vm.issue("u")
    for jj in range(11):
        a(f"buffer_load_dword v{KR+jj}, v96, s[{SK}:{SK+3}], 0 offen"); vm.issue("u")
        if jj >= 3:
            a(f"buffer_load_dword v{VR+jj-3}, v96, s[{SV}:{SV+3}], 0 offen"); vm.issue("u")
        if jj < 10:
            a("v_add_u32 v96, 896, v96")
    a(f"buffer_load_dwordx4 v[{GW}:{GW+3}], v99, s[{SG}:{SG+3}], 0 offen"); vm.issue("g")
    a(f"buffer_load_dwordx4 v[{GX}:{GX+3}], v100, s[{SX}:{SX+3}], 0 offen"); vm.issue("g")
    a(f"buffer_load_dwordx4 v[{GX+4}:{GX+7}], v100, s[{SX}:{SX+3}], 0 offen offset:896"); vm.issue("g")
    a("s_lshl_b32 s42, s34, 7"); a("s_lshl_b32 s43, s33, 5"); a("s_add_u32 s42, s42, s43")
    a("s_mul_i32 s42, s42, 896")
    a("v_lshrrev_b32 v12, 3, v1")
    a("v_mul_u32_u24 v12, 896, v12")
    a("v_add_u32 v12, s42, v12")
    a("v_and_b32 v13, 7, v1")
    a("v_lshrrev_b32 v14, 4, v1")
    a("v_xor_b32 v15, v13, v14")
    a("v_lshl_add_u32 v2, v15, 4, v12")
    a("v_xor_b32 v15, 4, v15")
    a("v_lshl_add_u32 v3, v15, 4, v12")
    a("v_add_u32 v3, 7168, v3")
    a("v_add_u32 v4, 14336, v2")
    a("v_add_u32 v5, 14336, v3")
    a("s_mul_i32 s42, s33, 43008"); a("s_mul_i32 s43, s35, 56"); a("s_add_u32 s42, s42, s43")
    a("v_lshrrev_b32 v12, 2, v1")
    a("v_mul_u32_u24 v12, 2688, v12")
    a("v_and_b32 v13, 3, v1")
    a("v_lshl_add_u32 v12, v13, 4, v12")
    a("v_add_u32 v6, s42, v12")
    a("s_lshl_b32 s44, s33, 12")
    a("s_lshl_b32 s45, s33, 10"); a("s_add_u32 s45, s45, 16384")
    def dma_chunk(c):
        base = (c % 5) * K1_SLOT
        a(f"s_movk_i32 s46, {c*128}")
        for jj in range(4):
            a(f"s_add_u32 m0, s44, {base + jj*1024}")
            a(f"buffer_load_dwordx4 v{2+jj}, s[{SX}:{SX+3}], s46 offen lds"); vm.issue(f"c{c}")
        for p in range(3):
            a(f"s_add_u32 m0, s45, {base + p*4096}")
            a(f"s_mov_b32 s47, {c*64*2688 + p*896}")
            a(f"buffer_load_dwordx4 v6, s[{SW}:{SW+3}], s47 offen lds"); vm.issue(f"c{c}")
    for c in range(5):
        dma_chunk(c)
    a("v_and_b32 v12, 31, v1")
    a("v_lshrrev_b32 v13, 5, v1")
    a("v_bfe_u32 v14, v1, 1, 3")
    a("v_lshlrev_b32 v15, 7, v12")
    a("v_add_u32 v15, s44, v15")
    for kk in range(4):
        a(f"v_or_b32 v{7+kk}, {2*kk}, v13")
        a(f"v_xor_b32 v{7+kk}, v{7+kk}, v14")
        a(f"v_lshl_add_u32 v{7+kk}, v{7+kk}, 4, v15")
    a("v_bfe_u32 v12, v1, 2, 2")
    a("v_lshl_add_u32 v12, v13, 3, v12")
    a("v_lshlrev_b32 v12, 6, v12")
    a("v_bfe_u32 v14, v1, 4, 1")
    a("v_lshl_add_u32 v12, v14, 5, v12")
    a("v_and_b32 v14, 3, v1")
    a("v_lshl_add_u32 v12, v14, 3, v12")
    a("v_add_u32 v11, 16384, v12")
    vm.wait("u")
    T = 140
    W0 = T
    for c in range(2):
        for j in range(2):
            a(f"v_lshlrev_b32 v{W0+4*c+2*j}, 16, v{WR+2*c+j}")
            a(f"v_and_b32 v{W0+4*c+2*j+1}, 0xffff0000, v{WR+2*c+j}")
    KL = T + 8
    for jj in range(11):
        a(f"v_lshlrev_b32 v{KL+jj}, 16, v{KR+jj}")
        a(f"v_and_b32 v{KR+jj}, 0xffff0000, v{KR+jj}")
    VL = KL + 11
    for e in range(8):
        a(f"v_lshlrev_b32 v{VL+e}, 16, v{VR+e}")
        a(f"v_and_b32 v{VR+e}, 0xffff0000, v{VR+e}")
    U0 = VL + 8
    for c in range(2):
        kb = KL if c == 0 else KR
        vb = VL if c == 0 else VR
        for e in range(8):
            d = U0 + 8*c + e
            a(f"v_mul_f32 v{d}, v{W0+4*c+3}, v{kb+e}")
            a(f"v_fmac_f32 v{d}, v{W0+4*c+2}, v{kb+e+1}")
            a(f"v_fmac_f32 v{d}, v{W0+4*c+1}, v{kb+e+2}")
            a(f"v_fmac_f32 v{d}, v{W0+4*c+0}, v{kb+e+3}")
        for e in range(8):
            d = U0 + 8*c + e
            a(f"v_mul_f32 v{d}, v{d}, v{vb+e}")
    PK = 192
    for c in range(2):
        for m in range(4):
            a(f"v_cvt_pk_bf16_f32 v{PK+4*c+m}, v{U0+8*c+7-2*m}, v{U0+8*c+6-2*m}")
    a("s_movk_i32 s46, 4096")
    a(f"buffer_store_dwordx4 v[{PK}:{PK+3}], v98, s[{SWS}:{SWS+3}], 0 offen"); vm.issue("us")
    a(f"buffer_store_dwordx4 v[{PK+4}:{PK+7}], v98, s[{SWS}:{SWS+3}], s46 offen"); vm.issue("us")
    vm.wait("g")
    for r in range(2):
        a(f"v_mov_b32 v{T+r}, 0")
    for i in range(4):
        a(f"v_lshlrev_b32 v{T+2}, 16, v{GW+i}")
        a(f"v_and_b32 v{T+3}, 0xffff0000, v{GW+i}")
        for r in range(2):
            a(f"v_lshlrev_b32 v{T+4}, 16, v{GX+4*r+i}")
            a(f"v_and_b32 v{T+5}, 0xffff0000, v{GX+4*r+i}")
            a(f"v_fmac_f32 v{T+r}, v{T+2}, v{T+4}")
            a(f"v_fmac_f32 v{T+r}, v{T+3}, v{T+5}")
    for r in range(2):
        wave_sum_dpp(a, T+r)
    for r in range(2):
        a(f"v_mul_f32 v{T+r}, {f32hex(-1.4426950408889634)}, v{T+r}")
        a(f"v_exp_f32 v{T+r}, v{T+r}")
        a(f"v_add_f32 v{T+r}, 1.0, v{T+r}")
        a(f"v_rcp_f32 v{T+r}, v{T+r}")
    a("s_lshl_b32 s46, s36, 3"); a(f"s_add_u32 s46, s46, {G_OFF}")
    a(f"v_mov_b32 v{T+2}, s46")
    a("s_mov_b32 s48, 0"); a("s_mov_b32 s49, 0x80000000")
    a("s_mov_b64 exec, s[48:49]")
    a(f"buffer_store_dwordx2 v[{T}:{T+1}], v{T+2}, s[{SWS}:{SWS+3}], 0 offen"); vm.issue("gs")
    a("s_mov_b64 exec, -1")
    ACC = (16, 32, 48)
    FR = (64, 80)
    def reads(t):
        c, kk = divmod(t, 4)
        f = FR[t % 2]
        a(f"ds_read_b128 v[{f}:{f+3}], v{7+kk}")
        for p in range(3):
            for j in range(2):
                a(f"ds_read_b64_tr_b16 v[{f+4+4*p+2*j}:{f+5+4*p+2*j}], v11 offset:{p*4096 + kk*1024 + j*256}")
    def advance(c):
        d = ((c % 5) - ((c-1) % 5)) * K1_SLOT
        for r in (7, 8, 9, 10, 11):
            a(f"v_add_u32 v{r}, {d & 0xffffffff}, v{r}")
    vm.wait("c0"); a("s_barrier")
    reads(0)
    for t in range(28):
        c, kk = divmod(t, 4)
        f = FR[t % 2]
        a("s_waitcnt lgkmcnt(0)")
        if kk == 3 and c < 6:
            vm.wait(f"c{c+1}"); a("s_barrier")
            advance(c+1)
        if t < 27:
            reads(t+1)
        if kk == 3 and c + 5 < 7:
            dma_chunk(c+5)
        C = lambda p: "0" if t == 0 else f"v[{ACC[p]}:{ACC[p]+15}]"
        a(f"v_mfma_f32_32x32x16_bf16 v[{ACC[0]}:{ACC[0]+15}], v[{f+4}:{f+7}], v[{f}:{f+3}], {C(0)}")
        a(f"v_mfma_f32_32x32x16_bf16 v[{ACC[1]}:{ACC[1]+15}], v[{f+8}:{f+11}], v[{f}:{f+3}], {C(1)}")
        a(f"v_mfma_f32_32x32x16_bf16 v[{ACC[2]}:{ACC[2]+15}], v[{f}:{f+3}], v[{f+12}:{f+15}], {C(2)}")
    a("s_mov_b32 s50, 0"); a("s_mov_b32 s51, -1")
    a("s_mov_b32 s52, 0xf0000000"); a("s_mov_b32 s53, 0xf0000000")
    a("s_lshl_b32 s42, s35, 6"); a("s_lshl_b32 s43, s34, 2"); a("s_add_u32 s42, s42, s43"); a("s_add_u32 s42, s42, s33")
    a("v_lshlrev_b32 v12, 4, v1")
    a("s_lshl_b32 s43, s42, 11"); a(f"s_add_u32 s43, s43, {QF_OFF}")
    a("v_add_u32 v13, s43, v12")
    a("s_lshl_b32 s43, s42, 12"); a(f"s_add_u32 s43, s43, {KV_OFF}")
    a("v_add_u32 v14, s43, v12")
    Q, K_, V_ = ACC
    a(f"s_mov_b32 s46, {f32hex(QSCALE)}")
    for r in range(16):
        a(f"v_mul_f32 v{Q+r}, s46, v{Q+r}")
    P = 64
    for j in range(8):
        a(f"v_cvt_pk_bf16_f32 v{P+j}, v{Q+2*j}, v{Q+2*j+1}")
    a(f"v_cndmask_b32 v{P+6}, v{P+6}, 0, s[50:51]")
    a(f"v_cndmask_b32 v{P+7}, v{P+7}, 0, s[50:51]")
    a(f"buffer_store_dwordx4 v[{P}:{P+3}], v13, s[{SWS}:{SWS+3}], 0 offen"); vm.issue("o")
    a(f"buffer_store_dwordx4 v[{P+4}:{P+7}], v13, s[{SWS}:{SWS+3}], 0 offen offset:1024"); vm.issue("o")
    for r in range(12, 16):
        a(f"v_cndmask_b32 v{K_+r}, v{K_+r}, 0, s[50:51]")
    a(f"v_mul_f32 v96, v{K_}, v{K_}")
    for r in range(1, 16):
        a(f"v_fmac_f32 v96, v{K_+r}, v{K_+r}")
    P = 72
    for j in range(8):
        a(f"v_cvt_pk_bf16_f32 v{P+j}, v{K_+2*j}, v{K_+2*j+1}")
    a("v_mov_b32 v98, 0x3f803f80"); a("v_mov_b32 v99, 0x00003f80")
    a(f"v_cndmask_b32 v{P+6}, v{P+6}, v98, s[50:51]")
    a(f"v_cndmask_b32 v{P+7}, v{P+7}, v99, s[50:51]")
    a(f"buffer_store_dwordx4 v[{P}:{P+3}], v14, s[{SWS}:{SWS+3}], 0 offen"); vm.issue("o")
    a(f"buffer_store_dwordx4 v[{P+4}:{P+7}], v14, s[{SWS}:{SWS+3}], 0 offen offset:1024"); vm.issue("o")
    a("v_mov_b32 v97, v96")
    a("v_permlane32_swap_b32 v96, v97")
    a("v_add_f32 v96, v96, v97")
    for sh in (1, 2, 4, 8):
        a(f"v_max_f32_dpp v96, v96, v96 row_shr:{sh} row_mask:0xf bank_mask:0xf bound_ctrl:1")
    a("v_max_f32_dpp v96, v96, v96 row_bcast:15 row_mask:0xa bank_mask:0xf")
    a("v_readlane_b32 s46, v96, 31")
    a("s_lshl_b32 s43, s42, 2"); a(f"s_add_u32 s43, s43, {KN_OFF}")
    a("v_mov_b32 v96, s46"); a("v_mov_b32 v97, s43")
    a("s_mov_b64 exec, 1")
    a(f"buffer_store_dword v96, v97, s[{SWS}:{SWS+3}], 0 offen"); vm.issue("o")
    a("s_mov_b64 exec, -1")
    P = 80
    for j in range(8):
        a(f"v_cvt_pk_bf16_f32 v{P+j}, v{V_+2*j}, v{V_+2*j+1}")
    a("v_and_b32 v96, 31, v1")
    a("v_cmp_eq_u32 vcc, 28, v96")
    a("v_mov_b32 v97, 0x3f803f80")
    a("v_cndmask_b32 v97, 0, v97, vcc")
    for j in range(8):
        a(f"v_cndmask_b32 v{P+j}, v{P+j}, v97, s[52:53]")
    a(f"buffer_store_dwordx4 v[{P}:{P+3}], v14, s[{SWS}:{SWS+3}], 0 offen offset:2048"); vm.issue("o")
    a(f"buffer_store_dwordx4 v[{P+4}:{P+7}], v14, s[{SWS}:{SWS+3}], 0 offen offset:3072"); vm.issue("o")
    a(f"{Lend}:")
    a("s_endpgm")
    return kernel_desc(name, 200)
```

```python
from common import *

K2_LDS = 131072
CB = 65536
HC_STRIDE = 4160
HCH_STRIDE = 4 * HC_STRIDE
UR_BASE = CB + 2 * HCH_STRIDE
UR_STRIDE = 4608
RED_BASE = UR_BASE + 2 * UR_STRIDE
FLAG_BASE = RED_BASE + 16384
assert FLAG_BASE + 64 <= K2_LDS
T_SAFE = 96.0

def conv_phase(a, vm, SWS, SSK):
    a("s_lshr_b32 s60, s33, 2"); a("s_and_b32 s61, s33, 3")
    a("s_lshl_b32 s62, s2, 1"); a("s_add_u32 s62, s62, s60")
    a("s_lshl_b32 s63, s62, 12")
    a(f"s_add_u32 s64, s{SSK}, s63"); a(f"s_addc_u32 s65, s{SSK+1}, 0")
    a("s_movk_i32 s66, 4096"); a("s_mov_b32 s67, 0x20000")
    a("s_lshl_b32 s68, s61, 10")
    a("v_lshl_add_u32 v2, v1, 4, s68")
    a("v_subrev_u32 v3, 16, v2")
    a("buffer_load_dwordx4 v[8:11], v3, s[64:67], 0 offen"); vm.issue("h")
    a("buffer_load_dwordx4 v[12:15], v2, s[64:67], 0 offen"); vm.issue("h")
    a("v_cmp_eq_u32 vcc, 1, v1")
    a("v_mov_b32 v4, 0x80000000"); a("v_mov_b32 v5, 4080")
    a("v_cndmask_b32 v5, v4, v5, vcc")
    a("buffer_load_dwordx4 v[16:19], v5, s[64:67], 0 offen"); vm.issue("h")
    a(f"s_mul_i32 s69, s60, {UR_STRIDE}"); a(f"s_add_u32 s69, s69, {UR_BASE}")
    a("s_add_u32 m0, s69, s68")
    a(f"s_add_u32 s70, s63, {UT_OFF}")
    a(f"buffer_load_dwordx4 v2, s[{SWS}:{SWS+3}], s70 offen lds"); vm.issue("ud")
    for i in range(4): a(f"v_mov_b32 v{20+i}, 0")
    a("v_lshl_add_u32 v6, v1, 4, s69")
    a("s_mov_b32 exec_hi, 0")
    a("ds_write_b128 v6, v[20:23] offset:4096")
    a("s_mov_b64 exec, -1")
    a(f"s_mul_i32 s71, s60, {HCH_STRIDE}"); a(f"s_add_u32 s71, s71, {CB}")
    a("v_add_u32 v6, s71, v2")
    def copies(R, Rn, addr, off):
        T = 24
        a(f"ds_write_b128 v{addr}, v[{R}:{R+3}] offset:{off}")
        src = [R, R+1, R+2, R+3, Rn, Rn+1]
        for k in range(4): a(f"v_alignbit_b32 v{T+k}, v{src[k+1]}, v{src[k]}, 16")
        for k in range(4): a(f"v_mov_b32 v{T+4+k}, v{src[k+1]}")
        for k in range(4): a(f"v_alignbit_b32 v{T+8+k}, v{src[k+2]}, v{src[k+1]}, 16")
        a(f"ds_write_b128 v{addr}, v[{T}:{T+3}] offset:{off + HC_STRIDE}")
        a(f"ds_write_b128 v{addr}, v[{T+4}:{T+7}] offset:{off + 2*HC_STRIDE}")
        a(f"ds_write_b128 v{addr}, v[{T+8}:{T+11}] offset:{off + 3*HC_STRIDE}")
    vm.wait("h")
    copies(8, 12, 6, 16)
    a("v_mul_u32_u24 v7, 4112, v1")
    a("v_add_u32 v7, s71, v7")
    a("s_mov_b64 exec, 3")
    copies(16, 20, 7, 0)
    a("s_mov_b64 exec, -1")
    vm.wait("ud")
    a("s_waitcnt lgkmcnt(0)")
    a("s_barrier")
    Lskip = a.label("conv_skip"); Lred = a.label("conv_red")
    a("s_cmp_ge_u32 s33, 4")
    a(f"s_cbranch_scc1 {Lskip}")
    a("s_lshr_b32 s60, s33, 1"); a("s_and_b32 s61, s33, 1")
    a(f"s_mul_i32 s71, s60, {HCH_STRIDE}"); a(f"s_add_u32 s71, s71, {CB}")
    a(f"s_mul_i32 s69, s60, {UR_STRIDE}"); a(f"s_add_u32 s69, s69, {UR_BASE}")
    a("s_lshl_b32 s72, s61, 8")
    a("v_and_b32 v2, 15, v1")
    a("v_lshrrev_b32 v3, 4, v1")
    a("v_add_u32 v4, 1, v2")
    a("v_and_b32 v5, 3, v4")
    a(f"v_mul_u32_u24 v5, {HC_STRIDE}, v5")
    a("v_lshrrev_b32 v4, 2, v4")
    a("v_lshl_add_u32 v4, v3, 1, v4")
    a("v_lshl_add_u32 v5, v4, 3, v5")
    a("s_add_u32 s73, s71, s72")
    a("v_add_u32 v6, s73, v5")
    a("v_lshlrev_b32 v4, 1, v2")
    a("v_sub_u32 v4, v3, v4")
    a("v_lshlrev_b32 v4, 4, v4")
    a(f"s_add_u32 s73, s69, {16*254 - 3584}"); a("s_add_u32 s73, s73, s72")
    a("v_add_u32 v7, s73, v4")
    DA = 8
    GS = (40, 72); FS = (104, 136)
    def loads(rr):
        g = GS[rr % 2]; f = FS[rr % 2]
        L = []
        for e in range(8):
            L.append(f"ds_read_b64 v[{f+4*e}:{f+4*e+1}], v6 offset:{512*e + 64*rr}")
            L.append(f"ds_read_b64 v[{f+4*e+2}:{f+4*e+3}], v6 offset:{512*e + 64*rr + 8}")
            L.append(f"ds_read_b128 v[{g+4*e}:{g+4*e+3}], v7 offset:{512*(7-e) + 64*rr}")
        return L
    for l in loads(0): a(l)
    for rr in range(4):
        g = GS[rr % 2]; f = FS[rr % 2]
        nxt = loads(rr+1) if rr < 3 else []
        a("s_waitcnt lgkmcnt(0)")
        for e in range(8):
            for jt in range(e, 8):
                m = jt - e
                C = "0" if (rr == 0 and e == 0) else f"v[{DA+4*jt}:{DA+4*jt+3}]"
                a(f"v_mfma_f32_16x16x32_bf16 v[{DA+4*jt}:{DA+4*jt+3}], v[{f+4*e}:{f+4*e+3}], v[{g+4*m}:{g+4*m+3}], {C}")
                if nxt: a(nxt.pop(0))
    a(f"s_lshl_b32 s73, s60, 13"); a(f"s_add_u32 s73, s73, {RED_BASE}")
    a("v_lshl_add_u32 v5, v1, 4, s73")
    a("s_cmp_eq_u32 s61, 0")
    a(f"s_cbranch_scc1 {Lskip}")
    for jt in range(8):
        a(f"ds_write_b128 v5, v[{DA+4*jt}:{DA+4*jt+3}] offset:{1024*jt}")
    a("s_waitcnt lgkmcnt(0)")
    a(f"{Lskip}:")
    a("s_barrier")
    Ldone = a.label("conv_done")
    a("s_and_b32 s73, s33, 5")
    a("s_cmp_lg_u32 s73, 0")
    a(f"s_cbranch_scc1 {Ldone}")
    PT = 40
    for jt in range(8):
        a(f"ds_read_b128 v[{PT+4*jt}:{PT+4*jt+3}], v5 offset:{1024*jt}")
    a("v_lshlrev_b32 v4, 5, v2"); a("v_lshl_add_u32 v4, v3, 3, v4")
    a(f"s_add_u32 s73, s69, {4088 - 3584}")
    a("v_sub_u32 v6, s73, v4")
    UU = 72
    for jt in range(8):
        a(f"ds_read_b64 v[{UU+2*jt}:{UU+2*jt+1}], v6 offset:{512*(7-jt)}")
    a("s_cmp_eq_u32 s60, 0")
    a("s_cselect_b32 s74, 16, 0")
    a("s_lshl_b32 s74, s59, s74"); a("s_and_b32 s74, s74, 0xffff0000")
    a("s_waitcnt lgkmcnt(0)")
    for jt in range(8):
        for rr in range(4):
            a(f"v_add_f32 v{DA+4*jt+rr}, v{DA+4*jt+rr}, v{PT+4*jt+rr}")
    a(f"v_add_u32 v7, s73, v4")
    a(f"s_lshl_b32 s73, s60, 13"); a(f"s_add_u32 s73, s73, {RED_BASE}")
    a("v_add_u32 v7, s73, v4")
    for jt in range(8):
        u0, u1 = UU+2*jt, UU+2*jt+1
        a(f"v_and_b32 v100, 0xffff0000, v{u1}")
        a(f"v_lshlrev_b32 v101, 16, v{u1}")
        a(f"v_and_b32 v102, 0xffff0000, v{u0}")
        a(f"v_lshlrev_b32 v103, 16, v{u0}")
        for rr in range(4):
            a(f"v_fmac_f32 v{DA+4*jt+rr}, s74, v{100+rr}")
        a(f"v_cvt_pk_bf16_f32 v104, v{DA+4*jt}, v{DA+4*jt+1}")
        a(f"v_cvt_pk_bf16_f32 v105, v{DA+4*jt+2}, v{DA+4*jt+3}")
        a(f"ds_write_b64 v7, v[104:105] offset:{512*jt}")
    a("s_waitcnt lgkmcnt(0)")
    for i in range(4):
        a(f"ds_read_b128 v[{40+4*i}:{43+4*i}], v5 offset:{1024*i}")
    a("s_lshl_b32 s73, s2, 1"); a("s_add_u32 s73, s73, s60"); a("s_lshl_b32 s73, s73, 12"); a(f"s_add_u32 s73, s73, {ZT_OFF}")
    a("v_lshl_add_u32 v6, v1, 4, s73")
    a("s_waitcnt lgkmcnt(0)")
    for i in range(4):
        a(f"buffer_store_dwordx4 v[{40+4*i}:{43+4*i}], v6, s[{SWS}:{SWS+3}], 0 offen offset:{1024*i}")
    a(f"{Ldone}:")

def gen_k2(a, name):
    vm = VM(a)
    kernel_header(a, name)
    Lend = a.label("k2_end")
    a("s_cmp_ge_u32 s2, 256")
    a(f"s_cbranch_scc1 {Lend}")
    SWS, SSK = 4, 8
    srd(a, SWS, KA_WS, WS_SIZE)
    a(f"s_load_dwordx2 s[{SSK}:{SSK+1}], s[0:1], {KA_SSMK}")
    a(f"s_load_dwordx2 s[10:11], s[0:1], {KA_SSMD}")
    a("v_and_b32 v1, 63, v0")
    a("v_lshrrev_b32 v2, 6, v0")
    a("v_readfirstlane_b32 s33, v2")
    a("s_and_b32 s34, s2, 15")
    a("s_lshr_b32 s35, s2, 4")
    a("s_lshr_b32 s36, s33, 2")
    a("s_and_b32 s37, s33, 3")
    a("s_waitcnt lgkmcnt(0)")
    a("s_min_u32 s38, s2, 223"); a("s_lshl_b32 s38, s38, 2")
    a("s_load_dword s59, s[10:11], s38")
    a("s_lshl_b32 s38, s34, 6"); a("s_lshl_b32 s39, s36, 5"); a("s_add_u32 s38, s38, s39"); a("s_add_u32 s38, s38, s37")
    a("s_lshl_b32 s38, s38, 12"); a(f"s_add_u32 s38, s38, {KV_OFF}")
    a("v_lshl_add_u32 v200, v1, 4, s38")
    a("s_lshl_b32 s40, s33, 12")
    def dma_stage(t):
        for f in range(4):
            a(f"s_add_u32 m0, s40, {(t % 4)*32768 + f*1024}")
            a(f"s_mov_b32 s41, {t*16384 + f*1024}")
            a(f"buffer_load_dwordx4 v200, s[{SWS}:{SWS+3}], s41 offen lds"); vm.issue(f"st{t}")
    dma_stage(0); dma_stage(1)
    Q0, Q1 = 204, 208
    a("s_lshl_b32 s38, s34, 6"); a("s_lshl_b32 s39, s35, 2"); a("s_add_u32 s38, s38, s39"); a("s_add_u32 s38, s38, s37")
    a("s_lshl_b32 s38, s38, 11"); a(f"s_add_u32 s38, s38, {QF_OFF}")
    a("v_lshl_add_u32 v201, v1, 4, s38")
    a(f"buffer_load_dwordx4 v[{Q0}:{Q0+3}], v201, s[{SWS}:{SWS+3}], 0 offen"); vm.issue("q")
    a(f"buffer_load_dwordx4 v[{Q1}:{Q1+3}], v201, s[{SWS}:{SWS+3}], 0 offen offset:1024"); vm.issue("q")
    a("s_lshl_b32 s38, s34, 8"); a(f"s_add_u32 s38, s38, {KN_OFF}")
    a("v_lshl_add_u32 v202, v1, 2, s38")
    a(f"buffer_load_dword v203, v202, s[{SWS}:{SWS+3}], 0 offen"); vm.issue("q")
    Lnoconv = a.label("noconv")
    a("s_waitcnt lgkmcnt(0)")
    a("s_cmp_ge_u32 s2, 224")
    a(f"s_cbranch_scc1 {Lnoconv}")
    vm2 = VM(a)
    conv_phase(a, vm2, SWS, SSK)
    a(f"{Lnoconv}:")
    vm.drain()
    T = 8
    a(f"v_mov_b32 v{T}, 0")
    for r in list(range(Q0, Q0+4)) + list(range(Q1, Q1+4)):
        a(f"v_lshlrev_b32 v{T+1}, 16, v{r}")
        a(f"v_and_b32 v{T+2}, 0xffff0000, v{r}")
        a(f"v_fmac_f32 v{T}, v{T+1}, v{T+1}")
        a(f"v_fmac_f32 v{T}, v{T+2}, v{T+2}")
    a(f"v_mov_b32 v{T+1}, v{T}")
    a(f"v_permlane32_swap_b32 v{T}, v{T+1}")
    a(f"v_add_f32 v{T}, v{T}, v{T+1}")
    wave_sum_dpp(a, 203, "max")
    a("v_readlane_b32 s42, v203, 63")
    a(f"v_mul_f32 v{T}, s42, v{T}")
    a(f"v_sqrt_f32 v{T}, v{T}")
    a(f"v_mul_f32 v{T}, {f32hex(1.02)}, v{T}")
    a(f"v_mov_b32 v{T+1}, {f32hex(T_SAFE/2)}")
    a(f"v_cmp_nle_f32 vcc, v{T}, v{T+1}")
    a("s_cmp_lg_u64 vcc, 0")
    a("s_cselect_b32 s43, 1, 0")
    a(f"v_mov_b32 v{T+1}, s43")
    a("s_lshl_b32 s44, s33, 2"); a(f"s_add_u32 s44, s44, {FLAG_BASE}")
    a(f"v_mov_b32 v{T+2}, s44")
    a(f"ds_write_b32 v{T+2}, v{T+1}")
    a("s_waitcnt lgkmcnt(0)")
    a("s_barrier")
    a(f"v_mov_b32 v{T+2}, {FLAG_BASE}")
    a(f"ds_read_b128 v[12:15], v{T+2}")
    a(f"ds_read_b128 v[16:19], v{T+2} offset:16")
    a("s_lshl_b32 s44, s36, 14")
    a("v_lshl_add_u32 v198, v1, 4, s44")
    a("v_add_u32 v199, 65536, v198")
    a("s_waitcnt lgkmcnt(0)")
    for r in range(13, 20): a(f"v_or_b32 v12, v12, v{r}")
    a("v_readfirstlane_b32 s43, v12")
    Lfast = a.label("fast")
    a("s_cmp_eq_u32 s43, 0")
    a(f"s_cbranch_scc1 {Lfast}")
    a(f"v_mov_b32 v{T}, 0xff800000")
    a("s_mov_b32 s45, 0")
    Lloop = a.label("maxloop")
    a(f"{Lloop}:")
    for f in range(2):
        a(f"s_add_u32 m0, s40, {65536 + f*1024}")
        a(f"s_add_u32 s41, s45, {f*1024}")
        a(f"buffer_load_dwordx4 v200, s[{SWS}:{SWS+3}], s41 offen lds")
    a("s_waitcnt vmcnt(0)")
    a("s_barrier")
    for j in range(4):
        a(f"ds_read_b128 v[20:23], v199 offset:{j*4096}")
        a(f"ds_read_b128 v[24:27], v199 offset:{j*4096+1024}")
        a("s_waitcnt lgkmcnt(0)")
        a(f"v_mfma_f32_32x32x16_bf16 v[32:47], v[20:23], v[{Q0}:{Q0+3}], 0")
        a(f"v_mfma_f32_32x32x16_bf16 v[32:47], v[24:27], v[{Q1}:{Q1+3}], v[32:47]")
        for r in range(16):
            a(f"v_max_f32 v{T}, v{T}, v{32+r}")
    a("s_barrier")
    a("s_add_u32 s45, s45, 16384")
    a("s_cmp_lt_u32 s45, 131072")
    a(f"s_cbranch_scc1 {Lloop}")
    a(f"v_mov_b32 v{T+1}, v{T}")
    a(f"v_permlane32_swap_b32 v{T}, v{T+1}")
    a(f"v_max_f32 v{T}, v{T}, v{T+1}")
    a("s_lshl_b32 s44, s33, 8"); a("s_add_u32 s44, s44, 65536")
    a("v_lshl_add_u32 v12, v1, 2, s44")
    a(f"ds_write_b32 v12, v{T}")
    a("s_waitcnt lgkmcnt(0)")
    a("s_barrier")
    a("s_xor_b32 s44, s33, 4"); a("s_lshl_b32 s44, s44, 8"); a("s_add_u32 s44, s44, 65536")
    a("v_lshl_add_u32 v12, v1, 2, s44")
    a(f"ds_read_b32 v13, v12")
    a("s_waitcnt lgkmcnt(0)")
    a(f"v_max_f32 v{T}, v{T}, v13")
    a("s_barrier")
    a(f"{Lfast}:")
    a(f"v_and_b32 v12, 0xffff0000, v{T}")
    a(f"v_sub_f32 v13, v{T}, v12")
    a(f"v_and_b32 v14, 0xffff0000, v13")
    a(f"v_sub_f32 v13, v13, v14")
    a(f"v_and_b32 v15, 0xffff0000, v13")
    a("v_xor_b32 v12, 0x80000000, v12"); a("v_xor_b32 v14, 0x80000000, v14"); a("v_xor_b32 v15, 0x80000000, v15")
    a("v_lshrrev_b32 v12, 16, v12")
    a("v_or_b32 v12, v12, v14")
    a("v_lshrrev_b32 v15, 16, v15")
    a("s_mov_b32 s50, 0"); a("s_mov_b32 s51, -1")
    a(f"v_cndmask_b32 v{Q1+2}, v{Q1+2}, v12, s[50:51]")
    a(f"v_cndmask_b32 v{Q1+3}, v{Q1+3}, v15, s[50:51]")
    SA, SB, P, O, K0, K1, VA, VB = 32, 48, 64, 72, 88, 92, 96, 104
    def addr(i, f):
        t, j = divmod(i, 4)
        slot = t % 4
        reg = 198 if slot < 2 else 199
        return reg, (slot % 2)*32768 + j*4096 + f*1024
    def rd(dst, i, f):
        reg, off = addr(i, f)
        a(f"ds_read_b128 v[{dst}:{dst+3}], v{reg} offset:{off}")
    def Sbuf(i): return SA if i % 2 == 0 else SB
    def Vbuf(i): return VA if i % 2 == 0 else VB
    def mfA(i): a(f"v_mfma_f32_32x32x16_bf16 v[{Sbuf(i)}:{Sbuf(i)+15}], v[{K0}:{K0+3}], v[{Q0}:{Q0+3}], 0")
    def mfB(i): a(f"v_mfma_f32_32x32x16_bf16 v[{Sbuf(i)}:{Sbuf(i)+15}], v[{K1}:{K1+3}], v[{Q1}:{Q1+3}], v[{Sbuf(i)}:{Sbuf(i)+15}]")
    def mfC(i): a(f"v_mfma_f32_32x32x16_bf16 v[{O}:{O+15}], v[{Vbuf(i)}:{Vbuf(i)+3}], v[{P}:{P+3}], {'0' if i == 0 else f'v[{O}:{O+15}]'}")
    def mfD(i): a(f"v_mfma_f32_32x32x16_bf16 v[{O}:{O+15}], v[{Vbuf(i)+4}:{Vbuf(i)+7}], v[{P+4}:{P+7}], v[{O}:{O+15}]")
    def ex(i, r): a(f"v_exp_f32 v{Sbuf(i)+r}, v{Sbuf(i)+r}")
    def cv(i, j): a(f"v_cvt_pk_bf16_f32 v{P+j}, v{Sbuf(i)+2*j}, v{Sbuf(i)+2*j+1}")
    dma_stage(2)
    rd(K0, 0, 0); rd(K1, 0, 1); rd(VA, 0, 2); rd(VA+4, 0, 3)
    a("s_waitcnt lgkmcnt(2)")
    mfA(0); mfB(0)
    rd(K0, 1, 0); rd(K1, 1, 1)
    NT = 32
    for i in range(NT):
        if i > 0: cv(i-1, 6); cv(i-1, 7)
        a("s_waitcnt lgkmcnt(0)")
        if i+1 < NT: mfA(i+1)
        for r in range(0, 4): ex(i, r)
        cv(i, 0); cv(i, 1)
        if i > 0: mfD(i-1)
        for r in range(4, 8): ex(i, r)
        cv(i, 2); cv(i, 3)
        if i+1 < NT: mfB(i+1)
        if (i+2) % 4 == 0 and i+2 < NT:
            n = (i+2)//4
            vm.wait(f"st{n}")
            a("s_barrier")
            if n+2 < 8: dma_stage(n+2)
        if i+2 < NT: rd(K0, i+2, 0); rd(K1, i+2, 1)
        if i+1 < NT: rd(Vbuf(i+1), i+1, 2); rd(Vbuf(i+1)+4, i+1, 3)
        for r in range(8, 12): ex(i, r)
        cv(i, 4); cv(i, 5)
        mfC(i)
        for r in range(12, 16): ex(i, r)
    cv(NT-1, 6); cv(NT-1, 7)
    mfD(NT-1)
    Lw = a.label("o_wait")
    a("s_and_b32 s44, s33, 3"); a("s_lshl_b32 s44, s44, 12")
    a("v_lshl_add_u32 v12, v1, 4, s44")
    a("s_cmp_lt_u32 s33, 4")
    a(f"s_cbranch_scc1 {Lw}")
    for i in range(4):
        a(f"ds_write_b128 v12, v[{O+4*i}:{O+4*i+3}] offset:{1024*i}")
    a("s_waitcnt lgkmcnt(0)")
    a(f"{Lw}:")
    a("s_barrier")
    a("s_cmp_ge_u32 s33, 4")
    a(f"s_cbranch_scc1 {Lend}")
    for i in range(4):
        a(f"ds_read_b128 v[{32+4*i}:{35+4*i}], v12 offset:{1024*i}")
    a("s_waitcnt lgkmcnt(0)")
    for r in range(16):
        a(f"v_add_f32 v{O+r}, v{O+r}, v{32+r}")
    a(f"v_mov_b32 v12, v{O+12}"); a(f"v_mov_b32 v13, v{O+12}")
    a("v_permlane32_swap_b32 v12, v13")
    a("v_rcp_f32 v13, v13")
    for r in range(16):
        a(f"v_mul_f32 v{O+r}, v13, v{O+r}")
    for j in range(8):
        a(f"v_cvt_pk_bf16_f32 v{P+j}, v{O+2*j}, v{O+2*j+1}")
    a(f"v_cndmask_b32 v{P+6}, v{P+6}, 0, s[50:51]")
    a(f"v_cndmask_b32 v{P+7}, v{P+7}, 0, s[50:51]")
    a("s_lshl_b32 s38, s35, 2"); a("s_add_u32 s38, s38, s37"); a("s_lshl_b32 s38, s38, 4"); a("s_add_u32 s38, s38, s34")
    a("s_lshl_b32 s38, s38, 11"); a(f"s_add_u32 s38, s38, {OF_OFF}")
    a("v_lshl_add_u32 v12, v1, 4, s38")
    a(f"buffer_store_dwordx4 v[{P}:{P+3}], v12, s[{SWS}:{SWS+3}], 0 offen")
    a(f"buffer_store_dwordx4 v[{P+4}:{P+7}], v12, s[{SWS}:{SWS+3}], 0 offen offset:1024")
    a(f"{Lend}:")
    a("s_endpgm")
    return kernel_desc(name, 216)
```

```python
from common import *
WO_NT = 30720
K3_OF = 2 * WO_NT
K3_ZT = K3_OF + 65536
K3_X = K3_ZT + 8192
K3_LDS = K3_X + 8192

def gen_k3(a, name):
    vm = VM(a)
    kernel_header(a, name)
    Lend = a.label("k3_end")
    a("s_cmp_ge_u32 s2, 224")
    a(f"s_cbranch_scc1 {Lend}")
    SWS, SWO, SX, SO = 4, 8, 12, 16
    srd(a, SWS, KA_WS, WS_SIZE); srd(a, SWO, KA_WO, D*D*2); srd(a, SX, KA_X, S*D*2); srd(a, SO, KA_OUT, S*D*2)
    a("v_and_b32 v1, 63, v0")
    a("v_lshrrev_b32 v2, 6, v0")
    a("v_readfirstlane_b32 s33, v2")
    a("s_mul_hi_u32 s34, s2, 0x24924925")
    a("s_mul_i32 s35, s34, 7"); a("s_sub_u32 s35, s2, s35")
    a("s_lshr_b32 s36, s33, 1")
    a("s_and_b32 s37, s33, 1")
    a("s_lshl_b32 s38, s34, 16"); a("s_lshl_b32 s39, s33, 14"); a("s_add_u32 s38, s38, s39"); a(f"s_add_u32 s38, s38, {OF_OFF}")
    a("v_lshl_add_u32 v2, v1, 4, s38")
    a("v_lshrrev_b32 v3, 2, v1"); a("v_mul_u32_u24 v3, 896, v3")
    a("v_and_b32 v4, 3, v1"); a("v_lshl_add_u32 v3, v4, 4, v3")
    a("s_mul_i32 s38, s36, 14336"); a("s_lshl_b32 s39, s35, 7"); a("s_add_u32 s38, s38, s39"); a("s_lshl_b32 s39, s37, 6"); a("s_add_u32 s38, s38, s39")
    a("v_add_u32 v3, s38, v3")
    a("v_lshrrev_b32 v4, 3, v1"); a("v_and_b32 v5, 7, v1")
    a("v_lshlrev_b32 v6, 12, v4"); a("v_lshl_add_u32 v6, v5, 4, v6")
    a("s_lshl_b32 s38, s35, 6"); a("s_lshl_b32 s39, s33, 4"); a("s_add_u32 s38, s38, s39"); a("s_lshl_b32 s38, s38, 12")
    a("s_lshl_b32 s39, s34, 7"); a("s_add_u32 s38, s38, s39"); a(f"s_add_u32 s38, s38, {ZT_OFF}")
    a("v_add_u32 v6, s38, v6")
    a("v_xor_b32 v7, v5, v4")
    a("v_mul_u32_u24 v8, 896, v4"); a("v_lshl_add_u32 v7, v7, 4, v8")
    a("s_lshl_b32 s38, s34, 6"); a("s_lshl_b32 s39, s33, 4"); a("s_add_u32 s38, s38, s39"); a("s_mul_i32 s38, s38, 896")
    a("s_lshl_b32 s39, s35, 7"); a("s_add_u32 s38, s38, s39")
    a("v_add_u32 v7, s38, v7")
    a("s_lshl_b32 s38, s34, 6"); a("s_lshl_b32 s39, s36, 5"); a("s_add_u32 s38, s38, s39")
    a("v_and_b32 v9, 31, v1")
    a("v_add_u32 v10, s38, v9")
    a(f"v_lshlrev_b32 v11, 2, v10"); a(f"v_add_u32 v11, {G_OFF}, v11")
    a("s_waitcnt lgkmcnt(0)")
    a(f"buffer_load_dword v12, v11, s[{SWS}:{SWS+3}], 0 offen"); vm.issue("g")
    a("s_mul_i32 s40, s37, 30720"); a("s_lshl_b32 s41, s36, 10"); a("s_add_u32 s40, s40, s41")
    for i in range(15):
        a(f"s_add_u32 m0, s40, {i*2048}")
        a(f"s_mov_b32 s42, {i*32*896}")
        a(f"buffer_load_dwordx4 v3, s[{SWO}:{SWO+3}], s42 offen lds"); vm.issue("wo")
    a("s_lshl_b32 s41, s33, 11")
    for i in range(2):
        a(f"s_add_u32 m0, s41, {K3_ZT + i*1024}")
        a(f"s_mov_b32 s42, {i*8*4096}")
        a(f"buffer_load_dwordx4 v6, s[{SWS}:{SWS+3}], s42 offen lds"); vm.issue("z")
    for i in range(2):
        a(f"s_add_u32 m0, s41, {K3_X + i*1024}")
        a(f"s_mov_b32 s42, {i*8*896}")
        a(f"buffer_load_dwordx4 v7, s[{SX}:{SX+3}], s42 offen lds"); vm.issue("x")
    a("s_lshl_b32 s41, s33, 14")
    for i in range(16):
        a(f"s_add_u32 m0, s41, {K3_OF + i*1024}")
        a(f"s_mov_b32 s42, {i*1024}")
        a(f"buffer_load_dwordx4 v2, s[{SWS}:{SWS+3}], s42 offen lds"); vm.issue("of")
    a("v_lshrrev_b32 v13, 5, v1")
    a("v_bfe_u32 v14, v1, 2, 2")
    a("v_lshl_add_u32 v14, v13, 2, v14")
    a("v_bfe_u32 v15, v1, 4, 1")
    a("v_and_b32 v16, 3, v1")
    a("v_lshlrev_b32 v17, 6, v14"); a("v_lshl_add_u32 v17, v15, 5, v17"); a("v_lshl_add_u32 v17, v16, 3, v17")
    a("s_mul_i32 s40, s37, 30720")
    a("v_add_u32 v17, s40, v17")
    a("s_lshl_b32 s40, s36, 15"); a(f"s_add_u32 s40, s40, {K3_OF}")
    a("v_lshl_add_u32 v18, v1, 4, s40")
    a("v_lshlrev_b32 v19, 7, v14"); a("v_lshl_add_u32 v19, v15, 5, v19"); a("v_lshl_add_u32 v19, v16, 3, v19")
    a("s_lshl_b32 s40, s37, 12"); a("s_lshl_b32 s41, s36, 6"); a("s_add_u32 s40, s40, s41"); a(f"s_add_u32 s40, s40, {K3_ZT}")
    a("v_add_u32 v19, s40, v19")
    a("s_lshl_b32 s40, s36, 12"); a(f"s_add_u32 s40, s40, {K3_X}")
    a("v_lshlrev_b32 v20, 7, v9"); a("v_lshl_add_u32 v20, v13, 3, v20"); a("v_add_u32 v20, s40, v20")
    a("v_and_b32 v21, 7, v9")
    a("s_lshl_b32 s40, s37, 2")
    for aa in range(4):
        a(f"s_add_u32 s41, s40, {aa}")
        a(f"v_xor_b32 v{22+aa}, s41, v21")
        a(f"v_lshl_add_u32 v{22+aa}, v{22+aa}, 4, v20")
    a("v_mul_u32_u24 v26, 896, v10"); a("v_lshl_add_u32 v26, v13, 4, v26")
    a("s_lshl_b32 s40, s35, 7"); a("s_lshl_b32 s41, s37, 6"); a("s_add_u32 s40, s40, s41")
    a("v_add_u32 v26, s40, v26")
    vm.drain()
    a("s_barrier")
    ACC = 32
    FA = (48, 56, 64);
    def reads(t):
        h, m = divmod(t, 2)
        f = FA[t % 3]
        a(f"ds_read_b64_tr_b16 v[{f}:{f+1}], v17 offset:{(28*h + 16*m)*64}")
        a(f"ds_read_b64_tr_b16 v[{f+2}:{f+3}], v17 offset:{(28*h + 16*m + 8)*64}")
        a(f"ds_read_b128 v[{f+4}:{f+7}], v18 offset:{t*1024}")
    reads(0); reads(1)
    for t in range(32):
        f = FA[t % 3]
        if t + 2 < 32:
            reads(t+2); a("s_waitcnt lgkmcnt(6)")
        elif t + 1 < 32:
            a("s_waitcnt lgkmcnt(3)")
        else:
            a("s_waitcnt lgkmcnt(0)")
        C = "0" if t == 0 else f"v[{ACC}:{ACC+15}]"
        a(f"v_mfma_f32_32x32x16_bf16 v[{ACC}:{ACC+15}], v[{f}:{f+3}], v[{f+4}:{f+7}], {C}")
    XR, ZR = 72, 80
    for aa in range(4):
        a(f"ds_read_b64 v[{XR+2*aa}:{XR+2*aa+1}], v{22+aa}")
        a(f"ds_read_b64_tr_b16 v[{ZR+2*aa}:{ZR+2*aa+1}], v19 offset:{aa*8*128}")
    a("v_sub_f32 v13, 1.0, v12")
    a("s_waitcnt lgkmcnt(0)")
    P = 88
    for aa in range(4):
        for half in range(2):
            xr = XR + 2*aa + half; zr = ZR + 2*aa + half
            a(f"v_lshlrev_b32 v96, 16, v{xr}"); a(f"v_and_b32 v97, 0xffff0000, v{xr}")
            a(f"v_lshlrev_b32 v98, 16, v{zr}"); a(f"v_and_b32 v99, 0xffff0000, v{zr}")
            a("v_mul_f32 v96, v96, v98"); a("v_mul_f32 v97, v97, v99")
            a("v_mul_f32 v96, v13, v96"); a("v_mul_f32 v97, v13, v97")
            r = ACC + 4*aa + 2*half
            a(f"v_fmac_f32 v96, v12, v{r}"); a(f"v_fmac_f32 v97, v12, v{r+1}")
            a(f"v_cvt_pk_bf16_f32 v{P+2*aa+half}, v96, v97")
    for ap in range(2):
        a(f"v_permlane32_swap_b32 v{P+4*ap}, v{P+4*ap+2}")
        a(f"v_permlane32_swap_b32 v{P+4*ap+1}, v{P+4*ap+3}")
        a(f"buffer_store_dwordx4 v[{P+4*ap}:{P+4*ap+3}], v26, s[{SO}:{SO+3}], 0 offen offset:{32*ap}")
    a(f"{Lend}:")
    a("s_endpgm")
    return kernel_desc(name, 104)
```

```python
import sys
from common import *
import k1, k2, k3
def header(launches):
    s = """; gated_mix: softmax MHA branch + H3 ssm-conv branch, gated mix.  Generated by hand-written generator scripts.
"""
    for l in launches: s += l + "\n"
    s += '.amdgcn_target "amdgcn-amd-amdhsa--gfx950"\n.text\n'
    return s
def build(out, stages):
    launches = []; body = []; descs = []
    for label, fn, grid, block, lds in stages:
        a = Asm()
        d = fn(a, label)
        lines, n = hazard_pass(a.lines)
        print(f"{label}: {sum(1 for l in lines if l.startswith('    ') and not l.strip().startswith(';'))} instrs, {n} nop states inserted", file=sys.stderr)
        body.append("\n".join(lines)); descs.append(d)
        launches.append(f"; @launch kernel={label} grid=({grid},1,1) block=({block},1,1) lds={lds}")
    text = header(launches) + "\n".join(body) + '\n.section .rodata,"a"\n' + "".join(descs)
    open(out, "w").write(text)
if __name__ == "__main__":
    stages = [("k1_kernel", k1.gen_k1, 256, 256, k1.K1_LDS), ("k2_kernel", k2.gen_k2, 256, 512, k2.K2_LDS), ("k3_kernel", k3.gen_k3, 224, 256, k3.K3_LDS)]
    build(sys.argv[1] if len(sys.argv) > 1 else "out.s", stages)
```

```python
import sys
from common import *
import k1, k2, k3
def header(launches):
    s = """; gated_mix: softmax MHA branch + H3 ssm-conv branch, gated mix.  Generated by hand-written generator scripts.
"""
    for l in launches: s += l + "\n"
    s += '.amdgcn_target "amdgcn-amd-amdhsa--gfx950"\n.text\n'
    return s
def build(out, stages):
    launches = []; body = []; descs = []
    for label, fn, grid, block, lds in stages:
        a = Asm()
        d = fn(a, label)
        lines, n = hazard_pass(a.lines)
        print(f"{label}: {sum(1 for l in lines if l.startswith('    ') and not l.strip().startswith(';'))} instrs, {n} nop states inserted", file=sys.stderr)
        body.append("\n".join(lines)); descs.append(d)
        launches.append(f"; @launch kernel={label} grid=({grid},1,1) block=({block},1,1) lds={lds}")
    text = header(launches) + "\n".join(body) + '\n.section .rodata,"a"\n' + "".join(descs)
    open(out, "w").write(text)
def gen_empty(a, name):
    kernel_header(a, name)
    a("s_endpgm")
    return kernel_desc(name, 8)
if __name__ == "__main__":
    import os
    stages = [("k1_kernel", k1.gen_k1, 256, 256, k1.K1_LDS), ("k2_kernel", k2.gen_k2, 256, 512, k2.K2_LDS), ("k3_kernel", k3.gen_k3, 224, 256, k3.K3_LDS)]
    ne = int(os.environ.get("EMPTY", "0"))
    for i in range(ne):
        stages.append((f"e{i}_kernel", gen_empty, 256, 64, 0))
    build(sys.argv[1] if len(sys.argv) > 1 else "out.s", stages)
```
